```python
import torch

def _softmax(x, axis=-1):
    return torch.softmax(x, dim=axis)

def _gelu(x):
    return torch.nn.functional.gelu(x, approximate='tanh')

def _silu(x):
    return torch.nn.functional.silu(x)

def _sigmoid(x):
    return torch.sigmoid(x)

def _layernorm(x, axis=-1, eps=1e-05):
    m = x.mean(dim=axis, keepdim=True)
    v = x.var(dim=axis, keepdim=True, unbiased=False)
    return (x - m) / torch.sqrt(v + eps)

def _scatter_add(tgt, idx, src, axis=0):
    return tgt.clone().index_add_(axis, idx, src)

def _segment_sum(src, seg, n):
    out = torch.zeros((n,) + src.shape[1:], dtype=src.dtype)
    return out.index_add_(0, seg, src)

def _pad(x, pw):
    flat = tuple((v for pair in reversed(pw) for v in pair))
    return torch.nn.functional.pad(x, flat)
kernel_name = 'sequential_preLN__spectral_fnet__mixer_gmlp__prompt'

def setup_inputs():

    _w = lambda a: (lambda t: t.to(torch.bfloat16) if t.is_floating_point() else t)(torch.as_tensor(a))

    def _A_setup():
        B, S, D = (1, 2048, 640)
        ns = torch.arange(S)[:, None] * torch.arange(S)[None, :]
        nd = torch.arange(D)[:, None] * torch.arange(D)[None, :]
        Ws_re = torch.cos(-2.0 * torch.pi * ns / S).to(float)
        Ws_im = torch.sin(-2.0 * torch.pi * ns / S).to(float)
        Wd_re = torch.cos(-2.0 * torch.pi * nd / D).to(float)
        Wd_im = torch.sin(-2.0 * torch.pi * nd / D).to(float)
        return {'x': _w((lambda *s: torch.randn(*s, dtype=torch.bfloat16) * 0.05)(B, S, D)), 'dft_seq_re': _w(Ws_re), 'dft_seq_im': _w(Ws_im), 'dft_hid_re': _w(Wd_re), 'dft_hid_im': _w(Wd_im)}
    _A_in = _A_setup()

    def _B_setup():
        B, S, D, F = (1, 2048, 640, 1536)
        Fh = F // 2
        return {'x': _w((lambda *s: torch.randn(*s, dtype=torch.bfloat16) * 0.05)(B, S, D)), 'w_in': _w((lambda *s: torch.randn(*s, dtype=torch.bfloat16) * 0.8)(D, 2 * Fh)), 'w_sp': _w(0.01 * (lambda *s: torch.randn(*s, dtype=torch.bfloat16) * 0.8)(S, S)), 'b_sp': _w(1.0 + 0.01 * (lambda *s: torch.randn(*s, dtype=torch.bfloat16) * 0.8)(S)), 'w_out': _w((lambda *s: torch.randn(*s, dtype=torch.bfloat16) * 0.8)(Fh, D))}
    _B_in = _B_setup()
    return {'A_x': _A_in['x'], 'A_dft_seq_re': _A_in['dft_seq_re'], 'A_dft_seq_im': _A_in['dft_seq_im'], 'A_dft_hid_re': _A_in['dft_hid_re'], 'A_dft_hid_im': _A_in['dft_hid_im'], 'B_x': _B_in['x'], 'B_w_in': _B_in['w_in'], 'B_w_sp': _B_in['w_sp'], 'B_b_sp': _B_in['b_sp'], 'B_w_out': _B_in['w_out']}

def reference(A_x, A_dft_seq_re, A_dft_seq_im, A_dft_hid_re, A_dft_hid_im, B_x, B_w_in, B_w_sp, B_b_sp, B_w_out):

    def _A_ref(x, dft_seq_re, dft_seq_im, dft_hid_re, dft_hid_im):
        a = torch.einsum('bsd,ed->bse', x, dft_hid_re)
        b = torch.einsum('bsd,ed->bse', x, dft_hid_im)
        y = torch.einsum('ts,bse->bte', dft_seq_re, a) - torch.einsum('ts,bse->bte', dft_seq_im, b)
        return y

    def _B_ref(x, w_in, w_sp, b_sp, w_out):
        B, S, D = x.shape
        F = w_in.shape[-1]
        Fh = F // 2
        z = _gelu(torch.einsum('bsd,df->bsf', x, w_in))
        z1 = z[..., :Fh].clone()
        z2 = _layernorm(z[..., Fh:], axis=-1)
        g = torch.einsum('ts,bsf->btf', w_sp, z2) + b_sp[None, :, None]
        return torch.einsum('bsf,fd->bsd', z1 * g, w_out)
    x = A_x
    h = x + _A_ref(_layernorm(x, axis=-1), A_dft_seq_re, A_dft_seq_im, A_dft_hid_re, A_dft_hid_im)
    h2 = h + _B_ref(_layernorm(h, axis=-1), B_w_in, B_w_sp, B_b_sp, B_w_out)
    return h2
```

```python
HDR = """; Kernarg layout for this problem (104 bytes, ptrs only, base s[0:1]):
"""
KA = dict(x=0, sre=8, sim=16, hre=24, him=32, bx=40, win=48, wsp=56, bsp=64, wout=72, out=80, dbg=88, ws=96)
SZ = dict(x=2048*640*2, sre=2048*2048*2, sim=2048*2048*2, hre=640*640*2, him=640*640*2, bx=2048*640*2,
          win=640*1536*2, wsp=2048*2048*2, bsp=2048*2, wout=768*640*2, out=2048*640*2, dbg=256, ws=268435456)

class Kernel:
    def __init__(self, name, grid, block, lds, vgpr=256, agpr=0, sgpr=96):
        self.name = name; self.grid = grid; self.block = block; self.lds = lds
        self.vgpr = vgpr; self.agpr = agpr; self.sgpr = sgpr
        self.L = []
        self.nlab = 0
    def __call__(self, s):
        for line in s.split('\n'):
            line = line.strip()
            if line:
                self.L.append(line if line.endswith(':') else '    ' + line)
    def label(self, base):
        self.nlab += 1
        return 'L_%s_%s_%d' % (self.name.replace('_kernel', ''), base, self.nlab)
    def srd(self, s, ptr, size, off=0):
        if off:
            self('s_add_u32 s%d, s%d, 0x%x' % (s, ptr, off))
            self('s_addc_u32 s%d, s%d, 0' % (s+1, ptr+1))
        else:
            self('s_mov_b32 s%d, s%d' % (s, ptr))
            self('s_mov_b32 s%d, s%d' % (s+1, ptr+1))
        self('s_mov_b32 s%d, 0x%x' % (s+2, size))
        self('s_mov_b32 s%d, 0x20000' % (s+3))
    def text(self):
        t = ['.globl %s' % self.name, '.p2align 8', '.type %s,@function' % self.name, '%s:' % self.name]
        t += self.L
        return '\n'.join(t) + '\n'
    def desc(self):
        acc = (self.vgpr + 3)//4*4
        nfv = acc + self.agpr if self.agpr else self.vgpr
        return ('.p2align 6\n.amdhsa_kernel %s\n  .amdhsa_next_free_vgpr %d\n  .amdhsa_next_free_sgpr %d\n  .amdhsa_accum_offset %d\n'
                '  .amdhsa_group_segment_fixed_size 0\n  .amdhsa_kernarg_size 104\n  .amdhsa_user_sgpr_count 2\n'
                '  .amdhsa_user_sgpr_kernarg_segment_ptr 1\n  .amdhsa_system_sgpr_workgroup_id_x 1\n.end_amdhsa_kernel\n') % (self.name, nfv, self.sgpr, acc)

def build(kernels, launches=None):
    launches = launches or kernels
    s = HDR
    for k in launches:
        s += '; @launch kernel=%s grid=(%d,1,1) block=(%d,1,1) lds=%d\n' % (k.name, k.grid, k.block, k.lds)
    s += '.amdgcn_target "amdgcn-amd-amdhsa--gfx950"\n.text\n'
    for k in kernels:
        s += k.text()
    s += '.section .rodata,"a"\n'
    for k in kernels:
        s += k.desc()
    return s

def vr(a, n=1):
    return 'v%d' % a if n == 1 else 'v[%d:%d]' % (a, a+n-1)
def ar(a, n=1):
    return 'a%d' % a if n == 1 else 'a[%d:%d]' % (a, a+n-1)
def sr(a, n=1):
    return 's%d' % a if n == 1 else 's[%d:%d]' % (a, a+n-1)
```

```python
import sys
from asmlib import *
NEMPTY = int(sys.argv[1]) if len(sys.argv) > 1 else 0
MB = 1 << 20
XN, AT, BT, H, HN, Z, Z2N, U = [i*8*MB for i in range(8)]

def loadptrs(k, names, base=4):
    d = {}
    for i, n in enumerate(names):
        k('s_load_dwordx2 s[%d:%d], s[0:1], %d' % (base+2*i, base+2*i+1, KA[n]))
        d[n] = base+2*i
    k('s_waitcnt lgkmcnt(0)')
    return d

def ln_kernel(name, src, srcoff, spitch, D, dstoff):
    k = Kernel(name, 512, 256, 0, vgpr=48)
    n = D // 64
    end = 'L_%s_end' % name
    k('s_cmp_ge_u32 s2, 512'); k('s_cbranch_scc1 %s' % end)
    p = loadptrs(k, [src, 'ws'] if src != 'ws' else ['ws'])
    k.srd(16, p[src], SZ[src] - srcoff, srcoff)
    k.srd(20, p['ws'], 8*MB, dstoff)
    k('v_lshrrev_b32 v1, 6, v0'); k('v_and_b32 v0, 63, v0')
    k('s_lshl_b32 s3, s2, 2'); k('v_add_u32 v1, s3, v1')
    k('s_movk_i32 s24, %d' % spitch); k('v_mul_lo_u32 v2, v1, s24'); k('v_lshl_add_u32 v2, v0, 1, v2')
    k('s_movk_i32 s24, %d' % (D*2)); k('v_mul_lo_u32 v3, v1, s24'); k('v_lshl_add_u32 v3, v0, 1, v3')
    for i in range(n): k('buffer_load_ushort v%d, v2, s[16:19], 0 offen offset:%d' % (8+i, i*128))
    k('s_waitcnt vmcnt(0)')
    for i in range(n): k('v_lshlrev_b32 v%d, 16, v%d' % (8+i, 8+i))
    def reduce(r):
        for x in (1, 2, 4, 8, 16, 32):
            k('v_xor_b32 v5, %d, v0' % x); k('v_lshlrev_b32 v5, 2, v5')
            k('ds_bpermute_b32 v6, v5, v%d' % r); k('s_waitcnt lgkmcnt(0)'); k('v_add_f32 v%d, v%d, v6' % (r, r))
    k('v_mov_b32 v4, 0')
    for i in range(n): k('v_add_f32 v4, v4, v%d' % (8+i))
    reduce(4)
    k('v_mul_f32 v4, 0x%x, v4' % f2h(1.0/D))
    for i in range(n): k('v_sub_f32 v%d, v%d, v4' % (8+i, 8+i))
    k('v_mov_b32 v4, 0')
    for i in range(n): k('v_fmac_f32 v4, v%d, v%d' % (8+i, 8+i))
    reduce(4)
    k('v_mov_b32 v7, 0x%x' % f2h(1e-5))
    k('v_fmac_f32 v7, 0x%x, v4' % f2h(1.0/D))
    k('v_rsq_f32 v7, v7'); k('s_nop 0')
    for i in range(n):
        k('v_mul_f32 v%d, v%d, v7' % (8+i, 8+i)); k('v_cvt_pk_bf16_f32 v%d, v%d, v%d' % (8+i, 8+i, 8+i))
        k('buffer_store_short v%d, v3, s[20:23], 0 offen offset:%d' % (8+i, i*128))
    k('%s:' % end); k('s_endpgm')
    return k

import struct
def f2h(f): return struct.unpack('<I', struct.pack('<f', f))[0]

def gemm_kernel(name, M, N, passes, epi):
    nt = N // 64
    grid = (M // 16) * nt
    k = Kernel(name, grid, 256, 0, vgpr=48)
    end = 'L_%s_end' % name
    k('s_cmp_ge_u32 s2, %d' % grid); k('s_cbranch_scc1 %s' % end)
    names = ['x', 'sre', 'sim', 'hre', 'him', 'win', 'wsp', 'bsp', 'wout', 'out', 'ws']
    p = loadptrs(k, names, 40)
    k('s_mov_b32 s4, 0x%x' % ((2**32 + nt - 1)//nt)); k('s_mul_hi_u32 s5, s2, s4'); k('s_mul_i32 s6, s5, %d' % nt); k('s_sub_u32 s6, s2, s6')
    k('v_lshrrev_b32 v1, 6, v0'); k('v_and_b32 v0, 63, v0'); k('v_and_b32 v2, 15, v0'); k('v_lshrrev_b32 v3, 4, v0')
    k('s_lshl_b32 s5, s5, 4'); k('s_lshl_b32 s6, s6, 6')
    k('v_add_u32 v4, s5, v2')
    k('v_lshl_add_u32 v5, v1, 4, v2'); k('v_add_u32 v5, s6, v5')
    for r in range(4): k('v_mov_b32 v%d, 0' % (20+r))
    for pi, (Ab, Ao, sam, Bb, Bo, sbn, sbk, K) in enumerate(passes):
        if pi:
            k('s_nop 7'); k('s_nop 7')
            for r in range(4): k('v_sub_f32 v%d, 0, v%d' % (20+r, 20+r))
        k.srd(8, p[Ab], SZ[Ab] - Ao, Ao); k.srd(12, p[Bb], SZ[Bb] - Bo, Bo)
        k('s_mov_b32 s7, %d' % sam); k('v_mul_lo_u32 v6, v4, s7'); k('v_lshl_add_u32 v6, v3, 4, v6')
        k('s_mov_b32 s7, %d' % sbn); k('v_mul_lo_u32 v7, v5, s7')
        k('s_mov_b32 s7, %d' % (sbk*8)); k('v_mul_lo_u32 v8, v3, s7'); k('v_add_u32 v7, v7, v8')
        k('s_mov_b32 s16, 0'); k('s_mov_b32 s17, 0'); k('s_mov_b32 s18, %d' % (K//32))
        lp = k.label('k')
        k('%s:' % lp)
        k('buffer_load_dwordx4 v[12:15], v6, s[8:11], s16 offen')
        if sbk == 2:
            k('buffer_load_dwordx4 v[16:19], v7, s[12:15], s17 offen')
        else:
            k('s_mov_b32 s19, s17')
            for j in range(8):
                k('buffer_load_ushort v%d, v7, s[12:15], s19 offen' % (32 + j))
                k('s_add_u32 s19, s19, %d' % sbk)
        k('s_add_u32 s16, s16, 64'); k('s_add_u32 s17, s17, %d' % (sbk*32))
        k('s_waitcnt vmcnt(0)')
        if sbk != 2:
            for j in range(4): k('v_lshl_or_b32 v%d, v%d, 16, v%d' % (16+j, 33+2*j, 32+2*j))
            k('s_nop 1')
        k('v_mfma_f32_16x16x32_bf16 v[20:23], v[12:15], v[16:19], v[20:23]')
        k('s_sub_u32 s18, s18, 1'); k('s_cmp_lg_u32 s18, 0'); k('s_cbranch_scc1 %s' % lp)
    k('s_nop 7'); k('s_nop 7')
    k('v_lshlrev_b32 v9, 2, v3'); k('v_add_u32 v9, s5, v9')
    epi(k, p)
    k('%s:' % end); k('s_endpgm')
    return k

def addr(k, vd, som, son):
    k('s_mov_b32 s7, %d' % som); k('v_mul_lo_u32 v%d, v9, s7' % vd)
    k('s_mov_b32 s7, %d' % son); k('v_mul_lo_u32 v10, v5, s7'); k('v_add_u32 v%d, v%d, v10' % (vd, vd))
def store4(k, srd, vaddr, som):
    k('s_mov_b32 s7, 0')
    for r in range(4):
        k('v_cvt_pk_bf16_f32 v%d, v%d, v%d' % (20+r, 20+r, 20+r))
        k('buffer_store_short v%d, v%d, s[%d:%d], s7 offen' % (20+r, vaddr, srd, srd+3)); k('s_add_u32 s7, s7, %d' % som)
def load4(k, srd, vaddr, som, vd):
    k('s_mov_b32 s7, 0')
    for r in range(4):
        k('buffer_load_ushort v%d, v%d, s[%d:%d], s7 offen' % (vd+r, vaddr, srd, srd+3)); k('s_add_u32 s7, s7, %d' % som)
    k('s_waitcnt vmcnt(0)')
    for r in range(4): k('v_lshlrev_b32 v%d, 16, v%d' % (vd+r, vd+r))
def epi_T(off):
    def f(k, p):
        k.srd(24, p['ws'], 8*MB, off); addr(k, 11, 2, 4096); store4(k, 24, 11, 2)
    return f
def epi_res(srcname, srcoff, dstname, dstoff):
    def f(k, p):
        k.srd(24, p[srcname], SZ['x'], srcoff); addr(k, 11, 1280, 2); load4(k, 24, 11, 1280, 28)
        for r in range(4): k('v_add_f32 v%d, v%d, v%d' % (20+r, 20+r, 28+r))
        k.srd(24, p[dstname], SZ['x'], dstoff); store4(k, 24, 11, 1280)
    return f
def gelu(k, v, t):
    c = 2*0.7978845608028654*1.4426950408889634
    k('v_mul_f32 v%d, v%d, v%d' % (t, v, v))
    k('v_mov_b32 v%d, 0x%x' % (t+1, f2h(-c)))
    k('v_fmac_f32 v%d, 0x%x, v%d' % (t+1, f2h(-c*0.044715), t))
    k('v_mul_f32 v%d, v%d, v%d' % (t, t+1, v))
    k('v_exp_f32 v%d, v%d' % (t, t)); k('s_nop 0')
    k('v_add_f32 v%d, 1.0, v%d' % (t, t))
    k('v_rcp_f32 v%d, v%d' % (t, t)); k('s_nop 0')
    k('v_mul_f32 v%d, v%d, v%d' % (v, v, t))
def epi_gelu(k, p):
    for r in range(4): gelu(k, 20+r, 28)
    k.srd(24, p['ws'], 8*MB, Z); addr(k, 11, 3072, 2); store4(k, 24, 11, 3072)
def epi_gate(k, p):
    k.srd(24, p['bsp'], SZ['bsp']); addr(k, 11, 2, 0); load4(k, 24, 11, 2, 28)
    for r in range(4): k('v_add_f32 v%d, v%d, v%d' % (20+r, 20+r, 28+r))
    k.srd(24, p['ws'], 8*MB, Z); addr(k, 11, 3072, 2); load4(k, 24, 11, 3072, 28)
    for r in range(4): k('v_mul_f32 v%d, v%d, v%d' % (20+r, 20+r, 28+r))
    k.srd(24, p['ws'], 8*MB, U); addr(k, 11, 1536, 2); store4(k, 24, 11, 1536)

ks = [
 ln_kernel('ln1_kernel', 'x', 0, 1280, 640, XN),
 gemm_kernel('ga_kernel', 2048, 640, [('ws', XN, 1280, 'hre', 0, 1280, 2, 640)], epi_T(AT)),
 gemm_kernel('gb_kernel', 2048, 640, [('ws', XN, 1280, 'him', 0, 1280, 2, 640)], epi_T(BT)),
 gemm_kernel('gy_kernel', 2048, 640, [('sim', 0, 4096, 'ws', BT, 4096, 2, 2048), ('sre', 0, 4096, 'ws', AT, 4096, 2, 2048)], epi_res('x', 0, 'ws', H)),
 ln_kernel('ln2_kernel', 'ws', H, 1280, 640, HN),
 gemm_kernel('gz_kernel', 2048, 1536, [('ws', HN, 1280, 'win', 0, 2, 3072, 640)], epi_gelu),
 ln_kernel('ln3_kernel', 'ws', Z + 1536, 3072, 768, Z2N),
 gemm_kernel('gg_kernel', 2048, 768, [('wsp', 0, 4096, 'ws', Z2N, 2, 1536, 2048)], epi_gate),
 gemm_kernel('go_kernel', 2048, 640, [('ws', U, 1536, 'wout', 0, 2, 1280, 768)], epi_res('ws', H, 'out', 0)),
]
e = Kernel('empty_kernel', 256, 256, 0, vgpr=8); e('s_endpgm')
launches = ks + [e]*NEMPTY
open(sys.argv[2] if len(sys.argv) > 2 else 'naive.s', 'w').write(build(ks + ([e] if NEMPTY else []), launches))
```

```python
import sys
from asmlib import *
NEMPTY = int(sys.argv[1]) if len(sys.argv) > 1 else 0
MB = 1 << 20
XN, AT, BT, H, HN, Z, Z2N, U = [i*8*MB for i in range(8)]

def loadptrs(k, names, base=4):
    d = {}
    for i, n in enumerate(names):
        k('s_load_dwordx2 s[%d:%d], s[0:1], %d' % (base+2*i, base+2*i+1, KA[n]))
        d[n] = base+2*i
    k('s_waitcnt lgkmcnt(0)')
    return d

def ln_kernel(name, src, srcoff, spitch, D, dstoff):
    k = Kernel(name, 512, 256, 0, vgpr=48)
    n = D // 64
    end = 'L_%s_end' % name
    k('s_cmp_ge_u32 s2, 512'); k('s_cbranch_scc1 %s' % end)
    p = loadptrs(k, [src, 'ws'] if src != 'ws' else ['ws'])
    k.srd(16, p[src], SZ[src] - srcoff, srcoff)
    k.srd(20, p['ws'], 8*MB, dstoff)
    k('v_lshrrev_b32 v1, 6, v0'); k('v_and_b32 v0, 63, v0')
    k('s_lshl_b32 s3, s2, 2'); k('v_add_u32 v1, s3, v1')
    k('s_movk_i32 s24, %d' % spitch); k('v_mul_lo_u32 v2, v1, s24'); k('v_lshl_add_u32 v2, v0, 1, v2')
    k('s_movk_i32 s24, %d' % (D*2)); k('v_mul_lo_u32 v3, v1, s24'); k('v_lshl_add_u32 v3, v0, 1, v3')
    for i in range(n): k('buffer_load_ushort v%d, v2, s[16:19], 0 offen offset:%d' % (8+i, i*128))
    k('s_waitcnt vmcnt(0)')
    for i in range(n): k('v_lshlrev_b32 v%d, 16, v%d' % (8+i, 8+i))
    def reduce(r):
        for x in (1, 2, 4, 8, 16, 32):
            k('v_xor_b32 v5, %d, v0' % x); k('v_lshlrev_b32 v5, 2, v5')
            k('ds_bpermute_b32 v6, v5, v%d' % r); k('s_waitcnt lgkmcnt(0)'); k('v_add_f32 v%d, v%d, v6' % (r, r))
    k('v_mov_b32 v4, 0')
    for i in range(n): k('v_add_f32 v4, v4, v%d' % (8+i))
    reduce(4)
    k('v_mul_f32 v4, 0x%x, v4' % f2h(1.0/D))
    for i in range(n): k('v_sub_f32 v%d, v%d, v4' % (8+i, 8+i))
    k('v_mov_b32 v4, 0')
    for i in range(n): k('v_fmac_f32 v4, v%d, v%d' % (8+i, 8+i))
    reduce(4)
    k('v_mov_b32 v7, 0x%x' % f2h(1e-5))
    k('v_fmac_f32 v7, 0x%x, v4' % f2h(1.0/D))
    k('v_rsq_f32 v7, v7'); k('s_nop 0')
    for i in range(n):
        k('v_mul_f32 v%d, v%d, v7' % (8+i, 8+i)); k('v_cvt_pk_bf16_f32 v%d, v%d, v%d' % (8+i, 8+i, 8+i))
        k('buffer_store_short v%d, v3, s[20:23], 0 offen offset:%d' % (8+i, i*128))
    k('%s:' % end); k('s_endpgm')
    return k

import struct
def f2h(f): return struct.unpack('<I', struct.pack('<f', f))[0]

def gemm_kernel(name, M, N, passes, epi):
    nt = N // 64
    grid = (M // 16) * nt
    k = Kernel(name, grid, 256, 0, vgpr=48)
    end = 'L_%s_end' % name
    k('s_cmp_ge_u32 s2, %d' % grid); k('s_cbranch_scc1 %s' % end)
    names = ['x', 'sre', 'sim', 'hre', 'him', 'win', 'wsp', 'bsp', 'wout', 'out', 'ws']
    p = loadptrs(k, names, 40)
    k('s_mov_b32 s4, 0x%x' % ((2**32 + nt - 1)//nt)); k('s_mul_hi_u32 s5, s2, s4'); k('s_mul_i32 s6, s5, %d' % nt); k('s_sub_u32 s6, s2, s6')
    k('v_lshrrev_b32 v1, 6, v0'); k('v_and_b32 v0, 63, v0'); k('v_and_b32 v2, 15, v0'); k('v_lshrrev_b32 v3, 4, v0')
    k('s_lshl_b32 s5, s5, 4'); k('s_lshl_b32 s6, s6, 6')
    k('v_add_u32 v4, s5, v2')
    k('v_lshl_add_u32 v5, v1, 4, v2'); k('v_add_u32 v5, s6, v5')
    for r in range(4): k('v_mov_b32 v%d, 0' % (20+r))
    for pi, (Ab, Ao, sam, Bb, Bo, sbn, sbk, K) in enumerate(passes):
        if pi:
            k('s_nop 7'); k('s_nop 7')
            for r in range(4): k('v_sub_f32 v%d, 0, v%d' % (20+r, 20+r))
        k.srd(8, p[Ab], SZ[Ab] - Ao, Ao); k.srd(12, p[Bb], SZ[Bb] - Bo, Bo)
        k('s_mov_b32 s7, %d' % sam); k('v_mul_lo_u32 v6, v4, s7'); k('v_lshl_add_u32 v6, v3, 4, v6')
        k('s_mov_b32 s7, %d' % sbn); k('v_mul_lo_u32 v7, v5, s7')
        k('s_mov_b32 s7, %d' % (sbk*8)); k('v_mul_lo_u32 v8, v3, s7'); k('v_add_u32 v7, v7, v8')
        k('s_mov_b32 s16, 0'); k('s_mov_b32 s17, 0'); k('s_mov_b32 s18, %d' % (K//32))
        lp = k.label('k')
        k('%s:' % lp)
        k('buffer_load_dwordx4 v[12:15], v6, s[8:11], s16 offen')
        if sbk == 2:
            k('buffer_load_dwordx4 v[16:19], v7, s[12:15], s17 offen')
        else:
            k('s_mov_b32 s19, s17')
            for j in range(8):
                k('buffer_load_ushort v%d, v7, s[12:15], s19 offen' % (32 + j))
                k('s_add_u32 s19, s19, %d' % sbk)
        k('s_add_u32 s16, s16, 64'); k('s_add_u32 s17, s17, %d' % (sbk*32))
        k('s_waitcnt vmcnt(0)')
        if sbk != 2:
            for j in range(4): k('v_lshl_or_b32 v%d, v%d, 16, v%d' % (16+j, 33+2*j, 32+2*j))
            k('s_nop 1')
        k('v_mfma_f32_16x16x32_bf16 v[20:23], v[12:15], v[16:19], v[20:23]')
        k('s_sub_u32 s18, s18, 1'); k('s_cmp_lg_u32 s18, 0'); k('s_cbranch_scc1 %s' % lp)
    k('s_nop 7'); k('s_nop 7')
    k('v_lshlrev_b32 v9, 2, v3'); k('v_add_u32 v9, s5, v9')
    epi(k, p)
    k('%s:' % end); k('s_endpgm')
    return k

def addr(k, vd, som, son):
    k('s_mov_b32 s7, %d' % som); k('v_mul_lo_u32 v%d, v9, s7' % vd)
    k('s_mov_b32 s7, %d' % son); k('v_mul_lo_u32 v10, v5, s7'); k('v_add_u32 v%d, v%d, v10' % (vd, vd))
def store4(k, srd, vaddr, som):
    k('s_mov_b32 s7, 0')
    for r in range(4):
        k('v_cvt_pk_bf16_f32 v%d, v%d, v%d' % (20+r, 20+r, 20+r))
        k('buffer_store_short v%d, v%d, s[%d:%d], s7 offen' % (20+r, vaddr, srd, srd+3)); k('s_add_u32 s7, s7, %d' % som)
def load4(k, srd, vaddr, som, vd):
    k('s_mov_b32 s7, 0')
    for r in range(4):
        k('buffer_load_ushort v%d, v%d, s[%d:%d], s7 offen' % (vd+r, vaddr, srd, srd+3)); k('s_add_u32 s7, s7, %d' % som)
    k('s_waitcnt vmcnt(0)')
    for r in range(4): k('v_lshlrev_b32 v%d, 16, v%d' % (vd+r, vd+r))
def epi_T(off):
    def f(k, p):
        k.srd(24, p['ws'], 8*MB, off); addr(k, 11, 2, 4096); store4(k, 24, 11, 2)
    return f
def epi_res(srcname, srcoff, dstname, dstoff):
    def f(k, p):
        k.srd(24, p[srcname], SZ['x'], srcoff); addr(k, 11, 1280, 2); load4(k, 24, 11, 1280, 28)
        for r in range(4): k('v_add_f32 v%d, v%d, v%d' % (20+r, 20+r, 28+r))
        k.srd(24, p[dstname], SZ['x'], dstoff); store4(k, 24, 11, 1280)
    return f
def gelu(k, v, t):
    c = 2*0.7978845608028654*1.4426950408889634
    k('v_mul_f32 v%d, v%d, v%d' % (t, v, v))
    k('v_mov_b32 v%d, 0x%x' % (t+1, f2h(-c)))
    k('v_fmac_f32 v%d, 0x%x, v%d' % (t+1, f2h(-c*0.044715), t))
    k('v_mul_f32 v%d, v%d, v%d' % (t, t+1, v))
    k('v_exp_f32 v%d, v%d' % (t, t)); k('s_nop 0')
    k('v_add_f32 v%d, 1.0, v%d' % (t, t))
    k('v_rcp_f32 v%d, v%d' % (t, t)); k('s_nop 0')
    k('v_mul_f32 v%d, v%d, v%d' % (v, v, t))
def epi_gelu(k, p):
    for r in range(4): gelu(k, 20+r, 28)
    k.srd(24, p['ws'], 8*MB, Z); addr(k, 11, 3072, 2); store4(k, 24, 11, 3072)
def epi_gate(k, p):
    k.srd(24, p['bsp'], SZ['bsp']); addr(k, 11, 2, 0); load4(k, 24, 11, 2, 28)
    for r in range(4): k('v_add_f32 v%d, v%d, v%d' % (20+r, 20+r, 28+r))
    k.srd(24, p['ws'], 8*MB, Z); addr(k, 11, 3072, 2); load4(k, 24, 11, 3072, 28)
    for r in range(4): k('v_mul_f32 v%d, v%d, v%d' % (20+r, 20+r, 28+r))
    k.srd(24, p['ws'], 8*MB, U); addr(k, 11, 1536, 2); store4(k, 24, 11, 1536)

ks = [
 ln_kernel('ln1_kernel', 'x', 0, 1280, 640, XN),
 gemm_kernel('ga_kernel', 2048, 640, [('ws', XN, 1280, 'hre', 0, 1280, 2, 640)], epi_T(AT)),
 gemm_kernel('gb_kernel', 2048, 640, [('ws', XN, 1280, 'him', 0, 1280, 2, 640)], epi_T(BT)),
 gemm_kernel('gy_kernel', 2048, 640, [('sim', 0, 4096, 'ws', BT, 4096, 2, 2048), ('sre', 0, 4096, 'ws', AT, 4096, 2, 2048)], epi_res('x', 0, 'ws', H)),
 ln_kernel('ln2_kernel', 'ws', H, 1280, 640, HN),
 gemm_kernel('gz_kernel', 2048, 1536, [('ws', HN, 1280, 'win', 0, 2, 3072, 640)], epi_gelu),
 ln_kernel('ln3_kernel', 'ws', Z + 1536, 3072, 768, Z2N),
 gemm_kernel('gg_kernel', 2048, 768, [('wsp', 0, 4096, 'ws', Z2N, 2, 1536, 2048)], epi_gate),
 gemm_kernel('go_kernel', 2048, 640, [('ws', U, 1536, 'wout', 0, 2, 1280, 768)], epi_res('ws', H, 'out', 0)),
]
e = Kernel('empty_kernel', 256, 256, 0, vgpr=24)
import os
IC = os.environ.get('IC', '')
if IC == 'straight':
    e('.rept %d' % (48*1024//8//8))
    for i in range(8): e('v_fma_f32 v%d, v%d, v%d, v%d' % (8+i, 8+i, 8+i, 8+i))
    e('.endr')
elif IC == 'loop':
    e('s_mov_b32 s4, 48')
    e('L_icl:')
    e('.rept %d' % (1024//8//8))
    for i in range(8): e('v_fma_f32 v%d, v%d, v%d, v%d' % (8+i, 8+i, 8+i, 8+i))
    e('.endr')
    e('s_sub_u32 s4, s4, 1'); e('s_cmp_lg_u32 s4, 0'); e('s_cbranch_scc1 L_icl')
e('s_endpgm')
launches = ([e]*NEMPTY + ks) if len(sys.argv) > 3 else (ks + [e]*NEMPTY)
open(sys.argv[2] if len(sys.argv) > 2 else 'naive.s', 'w').write(build(ks + ([e] if NEMPTY else []), launches))
```

```python
import sys
from asmlib import *
NEMPTY = int(sys.argv[1]) if len(sys.argv) > 1 else 0
MB = 1 << 20
XN, AT, BT, H, HN, Z, Z2N, U = [i*8*MB for i in range(8)]

def loadptrs(k, names, base=4):
    d = {}
    for i, n in enumerate(names):
        k('s_load_dwordx2 s[%d:%d], s[0:1], %d' % (base+2*i, base+2*i+1, KA[n]))
        d[n] = base+2*i
    k('s_waitcnt lgkmcnt(0)')
    return d

def ln_kernel(name, src, srcoff, spitch, D, dstoff):
    k = Kernel(name, 512, 256, 0, vgpr=48)
    n = D // 64
    end = 'L_%s_end' % name
    k('s_cmp_ge_u32 s2, 512'); k('s_cbranch_scc1 %s' % end)
    p = loadptrs(k, [src, 'ws'] if src != 'ws' else ['ws'])
    k.srd(16, p[src], SZ[src] - srcoff, srcoff)
    k.srd(20, p['ws'], 8*MB, dstoff)
    k('v_lshrrev_b32 v1, 6, v0'); k('v_and_b32 v0, 63, v0')
    k('s_lshl_b32 s3, s2, 2'); k('v_add_u32 v1, s3, v1')
    k('s_movk_i32 s24, %d' % spitch); k('v_mul_lo_u32 v2, v1, s24'); k('v_lshl_add_u32 v2, v0, 1, v2')
    k('s_movk_i32 s24, %d' % (D*2)); k('v_mul_lo_u32 v3, v1, s24'); k('v_lshl_add_u32 v3, v0, 1, v3')
    for i in range(n): k('buffer_load_ushort v%d, v2, s[16:19], 0 offen offset:%d' % (8+i, i*128))
    k('s_waitcnt vmcnt(0)')
    for i in range(n): k('v_lshlrev_b32 v%d, 16, v%d' % (8+i, 8+i))
    def reduce(r):
        for x in (1, 2, 4, 8, 16, 32):
            k('v_xor_b32 v5, %d, v0' % x); k('v_lshlrev_b32 v5, 2, v5')
            k('ds_bpermute_b32 v6, v5, v%d' % r); k('s_waitcnt lgkmcnt(0)'); k('v_add_f32 v%d, v%d, v6' % (r, r))
    k('v_mov_b32 v4, 0')
    for i in range(n): k('v_add_f32 v4, v4, v%d' % (8+i))
    reduce(4)
    k('v_mul_f32 v4, 0x%x, v4' % f2h(1.0/D))
    for i in range(n): k('v_sub_f32 v%d, v%d, v4' % (8+i, 8+i))
    k('v_mov_b32 v4, 0')
    for i in range(n): k('v_fmac_f32 v4, v%d, v%d' % (8+i, 8+i))
    reduce(4)
    k('v_mov_b32 v7, 0x%x' % f2h(1e-5))
    k('v_fmac_f32 v7, 0x%x, v4' % f2h(1.0/D))
    k('v_rsq_f32 v7, v7'); k('s_nop 0')
    for i in range(n):
        k('v_mul_f32 v%d, v%d, v7' % (8+i, 8+i)); k('v_cvt_pk_bf16_f32 v%d, v%d, v%d' % (8+i, 8+i, 8+i))
        k('buffer_store_short v%d, v3, s[20:23], 0 offen offset:%d' % (8+i, i*128))
    k('%s:' % end); k('s_endpgm')
    return k

import struct
def f2h(f): return struct.unpack('<I', struct.pack('<f', f))[0]

def gemm_kernel(name, M, N, passes, epi):
    nt = N // 64
    grid = (M // 16) * nt
    k = Kernel(name, grid, 256, 0, vgpr=48)
    end = 'L_%s_end' % name
    k('s_cmp_ge_u32 s2, %d' % grid); k('s_cbranch_scc1 %s' % end)
    names = ['x', 'sre', 'sim', 'hre', 'him', 'win', 'wsp', 'bsp', 'wout', 'out', 'ws']
    p = loadptrs(k, names, 40)
    k('s_mov_b32 s4, 0x%x' % ((2**32 + nt - 1)//nt)); k('s_mul_hi_u32 s5, s2, s4'); k('s_mul_i32 s6, s5, %d' % nt); k('s_sub_u32 s6, s2, s6')
    k('v_lshrrev_b32 v1, 6, v0'); k('v_and_b32 v0, 63, v0'); k('v_and_b32 v2, 15, v0'); k('v_lshrrev_b32 v3, 4, v0')
    k('s_lshl_b32 s5, s5, 4'); k('s_lshl_b32 s6, s6, 6')
    k('v_add_u32 v4, s5, v2')
    k('v_lshl_add_u32 v5, v1, 4, v2'); k('v_add_u32 v5, s6, v5')
    for r in range(4): k('v_mov_b32 v%d, 0' % (20+r))
    for pi, (Ab, Ao, sam, Bb, Bo, sbn, sbk, K) in enumerate(passes):
        if pi:
            k('s_nop 7'); k('s_nop 7')
            for r in range(4): k('v_sub_f32 v%d, 0, v%d' % (20+r, 20+r))
        k.srd(8, p[Ab], SZ[Ab] - Ao, Ao); k.srd(12, p[Bb], SZ[Bb] - Bo, Bo)
        k('s_mov_b32 s7, %d' % sam); k('v_mul_lo_u32 v6, v4, s7'); k('v_lshl_add_u32 v6, v3, 4, v6')
        k('s_mov_b32 s7, %d' % sbn); k('v_mul_lo_u32 v7, v5, s7')
        k('s_mov_b32 s7, %d' % (sbk*8)); k('v_mul_lo_u32 v8, v3, s7'); k('v_add_u32 v7, v7, v8')
        k('s_mov_b32 s16, 0'); k('s_mov_b32 s17, 0'); k('s_mov_b32 s18, %d' % (K//32))
        lp = k.label('k')
        k('%s:' % lp)
        k('buffer_load_dwordx4 v[12:15], v6, s[8:11], s16 offen')
        if sbk == 2:
            k('buffer_load_dwordx4 v[16:19], v7, s[12:15], s17 offen')
        else:
            k('s_mov_b32 s19, s17')
            for j in range(8):
                k('buffer_load_ushort v%d, v7, s[12:15], s19 offen' % (32 + j))
                k('s_add_u32 s19, s19, %d' % sbk)
        k('s_add_u32 s16, s16, 64'); k('s_add_u32 s17, s17, %d' % (sbk*32))
        k('s_waitcnt vmcnt(0)')
        if sbk != 2:
            for j in range(4): k('v_lshl_or_b32 v%d, v%d, 16, v%d' % (16+j, 33+2*j, 32+2*j))
            k('s_nop 1')
        k('v_mfma_f32_16x16x32_bf16 v[20:23], v[12:15], v[16:19], v[20:23]')
        k('s_sub_u32 s18, s18, 1'); k('s_cmp_lg_u32 s18, 0'); k('s_cbranch_scc1 %s' % lp)
    k('s_nop 7'); k('s_nop 7')
    k('v_lshlrev_b32 v9, 2, v3'); k('v_add_u32 v9, s5, v9')
    epi(k, p)
    k('%s:' % end); k('s_endpgm')
    return k

def addr(k, vd, som, son):
    k('s_mov_b32 s7, %d' % som); k('v_mul_lo_u32 v%d, v9, s7' % vd)
    k('s_mov_b32 s7, %d' % son); k('v_mul_lo_u32 v10, v5, s7'); k('v_add_u32 v%d, v%d, v10' % (vd, vd))
def store4(k, srd, vaddr, som):
    k('s_mov_b32 s7, 0')
    for r in range(4):
        k('v_cvt_pk_bf16_f32 v%d, v%d, v%d' % (20+r, 20+r, 20+r))
        k('buffer_store_short v%d, v%d, s[%d:%d], s7 offen' % (20+r, vaddr, srd, srd+3)); k('s_add_u32 s7, s7, %d' % som)
def load4(k, srd, vaddr, som, vd):
    k('s_mov_b32 s7, 0')
    for r in range(4):
        k('buffer_load_ushort v%d, v%d, s[%d:%d], s7 offen' % (vd+r, vaddr, srd, srd+3)); k('s_add_u32 s7, s7, %d' % som)
    k('s_waitcnt vmcnt(0)')
    for r in range(4): k('v_lshlrev_b32 v%d, 16, v%d' % (vd+r, vd+r))
def epi_T(off):
    def f(k, p):
        k.srd(24, p['ws'], 8*MB, off); addr(k, 11, 2, 4096); store4(k, 24, 11, 2)
    return f
def epi_res(srcname, srcoff, dstname, dstoff):
    def f(k, p):
        k.srd(24, p[srcname], SZ['x'], srcoff); addr(k, 11, 1280, 2); load4(k, 24, 11, 1280, 28)
        for r in range(4): k('v_add_f32 v%d, v%d, v%d' % (20+r, 20+r, 28+r))
        k.srd(24, p[dstname], SZ['x'], dstoff); store4(k, 24, 11, 1280)
    return f
def gelu(k, v, t):
    c = 2*0.7978845608028654*1.4426950408889634
    k('v_mul_f32 v%d, v%d, v%d' % (t, v, v))
    k('v_mov_b32 v%d, 0x%x' % (t+1, f2h(-c)))
    k('v_fmac_f32 v%d, 0x%x, v%d' % (t+1, f2h(-c*0.044715), t))
    k('v_mul_f32 v%d, v%d, v%d' % (t, t+1, v))
    k('v_exp_f32 v%d, v%d' % (t, t)); k('s_nop 0')
    k('v_add_f32 v%d, 1.0, v%d' % (t, t))
    k('v_rcp_f32 v%d, v%d' % (t, t)); k('s_nop 0')
    k('v_mul_f32 v%d, v%d, v%d' % (v, v, t))
def epi_gelu(k, p):
    for r in range(4): gelu(k, 20+r, 28)
    k.srd(24, p['ws'], 8*MB, Z); addr(k, 11, 3072, 2); store4(k, 24, 11, 3072)
def epi_gate(k, p):
    k.srd(24, p['bsp'], SZ['bsp']); addr(k, 11, 2, 0); load4(k, 24, 11, 2, 28)
    for r in range(4): k('v_add_f32 v%d, v%d, v%d' % (20+r, 20+r, 28+r))
    k.srd(24, p['ws'], 8*MB, Z); addr(k, 11, 3072, 2); load4(k, 24, 11, 3072, 28)
    for r in range(4): k('v_mul_f32 v%d, v%d, v%d' % (20+r, 20+r, 28+r))
    k.srd(24, p['ws'], 8*MB, U); addr(k, 11, 1536, 2); store4(k, 24, 11, 1536)

ks = [
 ln_kernel('ln1_kernel', 'x', 0, 1280, 640, XN),
 gemm_kernel('ga_kernel', 2048, 640, [('ws', XN, 1280, 'hre', 0, 1280, 2, 640)], epi_T(AT)),
 gemm_kernel('gb_kernel', 2048, 640, [('ws', XN, 1280, 'him', 0, 1280, 2, 640)], epi_T(BT)),
 gemm_kernel('gy_kernel', 2048, 640, [('sim', 0, 4096, 'ws', BT, 4096, 2, 2048), ('sre', 0, 4096, 'ws', AT, 4096, 2, 2048)], epi_res('x', 0, 'ws', H)),
 ln_kernel('ln2_kernel', 'ws', H, 1280, 640, HN),
 gemm_kernel('gz_kernel', 2048, 1536, [('ws', HN, 1280, 'win', 0, 2, 3072, 640)], epi_gelu),
 ln_kernel('ln3_kernel', 'ws', Z + 1536, 3072, 768, Z2N),
 gemm_kernel('gg_kernel', 2048, 768, [('wsp', 0, 4096, 'ws', Z2N, 2, 1536, 2048)], epi_gate),
 gemm_kernel('go_kernel', 2048, 640, [('ws', U, 1536, 'wout', 0, 2, 1280, 768)], epi_res('ws', H, 'out', 0)),
]
e = Kernel('empty_kernel', 256, 256, 0, vgpr=24)
import os
IC = os.environ.get('IC', '')
if IC == 'straight':
    e('.rept %d' % (48*1024//8//8))
    for i in range(8): e('v_fma_f32 v%d, v%d, v%d, v%d' % (8+i, 8+i, 8+i, 8+i))
    e('.endr')
elif IC == 'loop':
    e('s_mov_b32 s4, 48')
    e('L_icl:')
    e('.rept %d' % (1024//8//8))
    for i in range(8): e('v_fma_f32 v%d, v%d, v%d, v%d' % (8+i, 8+i, 8+i, 8+i))
    e('.endr')
    e('s_sub_u32 s4, s4, 1'); e('s_cmp_lg_u32 s4, 0'); e('s_cbranch_scc1 L_icl')
e('s_endpgm')
if IC == 'probe':
    e.L = []
    e('s_cmp_ge_u32 s2, 256'); e('s_cbranch_scc1 L_pend')
    e('s_memtime s[40:41]')
    e('s_load_dwordx2 s[4:5], s[0:1], 0'); e('s_load_dwordx2 s[6:7], s[0:1], 88'); e('s_load_dwordx2 s[8:9], s[0:1], 56'); e('s_load_dwordx2 s[10:11], s[0:1], 48')
    e('v_lshlrev_b32 v4, 7, v0')
    e('s_waitcnt lgkmcnt(0)')
    e('s_memtime s[42:43]')
    e.srd(12, 4, SZ['x']); e.srd(16, 6, 256); e.srd(20, 8, SZ['wsp']); e.srd(24, 10, SZ['win'])
    e('s_mul_i32 s30, s2, 10240'); e('v_cmp_gt_u32 vcc, 80, v0'); e('s_and_saveexec_b64 s[32:33], vcc')
    e('buffer_load_dword v5, v4, s[12:15], s30 offen'); e('s_mov_b64 exec, s[32:33]')
    e('s_waitcnt vmcnt(0)'); e('s_barrier'); e('s_memtime s[44:45]')
    e('s_lshl_b32 s30, s2, 15'); e('buffer_load_dword v5, v4, s[20:23], s30 offen'); e('s_waitcnt vmcnt(0)'); e('s_barrier'); e('s_memtime s[46:47]')
    e('s_mul_i32 s30, s2, 7680'); e('v_cmp_gt_u32 vcc, 60, v0'); e('s_and_saveexec_b64 s[32:33], vcc')
    e('buffer_load_dword v5, v4, s[24:27], s30 offen'); e('s_mov_b64 exec, s[32:33]')
    e('s_waitcnt vmcnt(0)'); e('s_barrier'); e('s_memtime s[48:49]')
    e('s_waitcnt lgkmcnt(0)')
    e('s_sub_u32 s48, s48, s46'); e('s_sub_u32 s46, s46, s44'); e('s_sub_u32 s44, s44, s42'); e('s_sub_u32 s42, s42, s40')
    e('v_mov_b32 v8, s42'); e('v_mov_b32 v9, s44'); e('v_mov_b32 v10, s46'); e('v_mov_b32 v11, s48')
    e('s_and_b32 s30, s2, 0x3f'); e('s_cmp_lg_u32 s30, 5'); e('s_cbranch_scc1 L_pend')
    e('s_lshr_b32 s30, s2, 6'); e('s_lshl_b32 s30, s30, 4'); e('v_mov_b32 v5, 0'); e('v_cmp_eq_u32 vcc, 0, v0'); e('s_and_saveexec_b64 s[32:33], vcc')
    e('buffer_store_dwordx4 v[8:11], v5, s[16:19], s30 offen')
    e('L_pend:'); e('s_endpgm')
launches = ([e]*NEMPTY + ks) if len(sys.argv) > 3 else (ks + [e]*NEMPTY)
open(sys.argv[2] if len(sys.argv) > 2 else 'naive.s', 'w').write(build(ks + ([e] if NEMPTY else []), launches))
```

```python
import sys
from asmlib import *
NEMPTY = int(sys.argv[1]) if len(sys.argv) > 1 else 0
MB = 1 << 20
XN, AT, BT, H, HN, Z, Z2N, U = [i*8*MB for i in range(8)]

def loadptrs(k, names, base=4):
    d = {}
    for i, n in enumerate(names):
        k('s_load_dwordx2 s[%d:%d], s[0:1], %d' % (base+2*i, base+2*i+1, KA[n]))
        d[n] = base+2*i
    k('s_waitcnt lgkmcnt(0)')
    return d

def ln_kernel(name, src, srcoff, spitch, D, dstoff):
    k = Kernel(name, 512, 256, 0, vgpr=48)
    n = D // 64
    end = 'L_%s_end' % name
    k('s_cmp_ge_u32 s2, 512'); k('s_cbranch_scc1 %s' % end)
    p = loadptrs(k, [src, 'ws'] if src != 'ws' else ['ws'])
    k.srd(16, p[src], SZ[src] - srcoff, srcoff)
    k.srd(20, p['ws'], 8*MB, dstoff)
    k('v_lshrrev_b32 v1, 6, v0'); k('v_and_b32 v0, 63, v0')
    k('s_lshl_b32 s3, s2, 2'); k('v_add_u32 v1, s3, v1')
    k('s_movk_i32 s24, %d' % spitch); k('v_mul_lo_u32 v2, v1, s24'); k('v_lshl_add_u32 v2, v0, 1, v2')
    k('s_movk_i32 s24, %d' % (D*2)); k('v_mul_lo_u32 v3, v1, s24'); k('v_lshl_add_u32 v3, v0, 1, v3')
    for i in range(n): k('buffer_load_ushort v%d, v2, s[16:19], 0 offen offset:%d' % (8+i, i*128))
    k('s_waitcnt vmcnt(0)')
    for i in range(n): k('v_lshlrev_b32 v%d, 16, v%d' % (8+i, 8+i))
    def reduce(r):
        for x in (1, 2, 4, 8, 16, 32):
            k('v_xor_b32 v5, %d, v0' % x); k('v_lshlrev_b32 v5, 2, v5')
            k('ds_bpermute_b32 v6, v5, v%d' % r); k('s_waitcnt lgkmcnt(0)'); k('v_add_f32 v%d, v%d, v6' % (r, r))
    k('v_mov_b32 v4, 0')
    for i in range(n): k('v_add_f32 v4, v4, v%d' % (8+i))
    reduce(4)
    k('v_mul_f32 v4, 0x%x, v4' % f2h(1.0/D))
    for i in range(n): k('v_sub_f32 v%d, v%d, v4' % (8+i, 8+i))
    k('v_mov_b32 v4, 0')
    for i in range(n): k('v_fmac_f32 v4, v%d, v%d' % (8+i, 8+i))
    reduce(4)
    k('v_mov_b32 v7, 0x%x' % f2h(1e-5))
    k('v_fmac_f32 v7, 0x%x, v4' % f2h(1.0/D))
    k('v_rsq_f32 v7, v7'); k('s_nop 0')
    for i in range(n):
        k('v_mul_f32 v%d, v%d, v7' % (8+i, 8+i)); k('v_cvt_pk_bf16_f32 v%d, v%d, v%d' % (8+i, 8+i, 8+i))
        k('buffer_store_short v%d, v3, s[20:23], 0 offen offset:%d' % (8+i, i*128))
    k('%s:' % end); k('s_endpgm')
    return k

import struct
def f2h(f): return struct.unpack('<I', struct.pack('<f', f))[0]

def gemm_kernel(name, M, N, passes, epi):
    nt = N // 64
    grid = (M // 16) * nt
    k = Kernel(name, grid, 256, 0, vgpr=48)
    end = 'L_%s_end' % name
    k('s_cmp_ge_u32 s2, %d' % grid); k('s_cbranch_scc1 %s' % end)
    names = ['x', 'sre', 'sim', 'hre', 'him', 'win', 'wsp', 'bsp', 'wout', 'out', 'ws']
    p = loadptrs(k, names, 40)
    k('s_mov_b32 s4, 0x%x' % ((2**32 + nt - 1)//nt)); k('s_mul_hi_u32 s5, s2, s4'); k('s_mul_i32 s6, s5, %d' % nt); k('s_sub_u32 s6, s2, s6')
    k('v_lshrrev_b32 v1, 6, v0'); k('v_and_b32 v0, 63, v0'); k('v_and_b32 v2, 15, v0'); k('v_lshrrev_b32 v3, 4, v0')
    k('s_lshl_b32 s5, s5, 4'); k('s_lshl_b32 s6, s6, 6')
    k('v_add_u32 v4, s5, v2')
    k('v_lshl_add_u32 v5, v1, 4, v2'); k('v_add_u32 v5, s6, v5')
    for r in range(4): k('v_mov_b32 v%d, 0' % (20+r))
    for pi, (Ab, Ao, sam, Bb, Bo, sbn, sbk, K) in enumerate(passes):
        if pi:
            k('s_nop 7'); k('s_nop 7')
            for r in range(4): k('v_sub_f32 v%d, 0, v%d' % (20+r, 20+r))
        k.srd(8, p[Ab], SZ[Ab] - Ao, Ao); k.srd(12, p[Bb], SZ[Bb] - Bo, Bo)
        k('s_mov_b32 s7, %d' % sam); k('v_mul_lo_u32 v6, v4, s7'); k('v_lshl_add_u32 v6, v3, 4, v6')
        k('s_mov_b32 s7, %d' % sbn); k('v_mul_lo_u32 v7, v5, s7')
        k('s_mov_b32 s7, %d' % (sbk*8)); k('v_mul_lo_u32 v8, v3, s7'); k('v_add_u32 v7, v7, v8')
        k('s_mov_b32 s16, 0'); k('s_mov_b32 s17, 0'); k('s_mov_b32 s18, %d' % (K//32))
        lp = k.label('k')
        k('%s:' % lp)
        k('buffer_load_dwordx4 v[12:15], v6, s[8:11], s16 offen')
        if sbk == 2:
            k('buffer_load_dwordx4 v[16:19], v7, s[12:15], s17 offen')
        else:
            k('s_mov_b32 s19, s17')
            for j in range(8):
                k('buffer_load_ushort v%d, v7, s[12:15], s19 offen' % (32 + j))
                k('s_add_u32 s19, s19, %d' % sbk)
        k('s_add_u32 s16, s16, 64'); k('s_add_u32 s17, s17, %d' % (sbk*32))
        k('s_waitcnt vmcnt(0)')
        if sbk != 2:
            for j in range(4): k('v_lshl_or_b32 v%d, v%d, 16, v%d' % (16+j, 33+2*j, 32+2*j))
            k('s_nop 1')
        k('v_mfma_f32_16x16x32_bf16 v[20:23], v[12:15], v[16:19], v[20:23]')
        k('s_sub_u32 s18, s18, 1'); k('s_cmp_lg_u32 s18, 0'); k('s_cbranch_scc1 %s' % lp)
    k('s_nop 7'); k('s_nop 7')
    k('v_lshlrev_b32 v9, 2, v3'); k('v_add_u32 v9, s5, v9')
    epi(k, p)
    k('%s:' % end); k('s_endpgm')
    return k

def addr(k, vd, som, son):
    k('s_mov_b32 s7, %d' % som); k('v_mul_lo_u32 v%d, v9, s7' % vd)
    k('s_mov_b32 s7, %d' % son); k('v_mul_lo_u32 v10, v5, s7'); k('v_add_u32 v%d, v%d, v10' % (vd, vd))
def store4(k, srd, vaddr, som):
    k('s_mov_b32 s7, 0')
    for r in range(4):
        k('v_cvt_pk_bf16_f32 v%d, v%d, v%d' % (20+r, 20+r, 20+r))
        k('buffer_store_short v%d, v%d, s[%d:%d], s7 offen' % (20+r, vaddr, srd, srd+3)); k('s_add_u32 s7, s7, %d' % som)
def load4(k, srd, vaddr, som, vd):
    k('s_mov_b32 s7, 0')
    for r in range(4):
        k('buffer_load_ushort v%d, v%d, s[%d:%d], s7 offen' % (vd+r, vaddr, srd, srd+3)); k('s_add_u32 s7, s7, %d' % som)
    k('s_waitcnt vmcnt(0)')
    for r in range(4): k('v_lshlrev_b32 v%d, 16, v%d' % (vd+r, vd+r))
def epi_T(off):
    def f(k, p):
        k.srd(24, p['ws'], 8*MB, off); addr(k, 11, 2, 4096); store4(k, 24, 11, 2)
    return f
def epi_res(srcname, srcoff, dstname, dstoff):
    def f(k, p):
        k.srd(24, p[srcname], SZ['x'], srcoff); addr(k, 11, 1280, 2); load4(k, 24, 11, 1280, 28)
        for r in range(4): k('v_add_f32 v%d, v%d, v%d' % (20+r, 20+r, 28+r))
        k.srd(24, p[dstname], SZ['x'], dstoff); store4(k, 24, 11, 1280)
    return f
def gelu(k, v, t):
    c = 2*0.7978845608028654*1.4426950408889634
    k('v_mul_f32 v%d, v%d, v%d' % (t, v, v))
    k('v_mov_b32 v%d, 0x%x' % (t+1, f2h(-c)))
    k('v_fmac_f32 v%d, 0x%x, v%d' % (t+1, f2h(-c*0.044715), t))
    k('v_mul_f32 v%d, v%d, v%d' % (t, t+1, v))
    k('v_exp_f32 v%d, v%d' % (t, t)); k('s_nop 0')
    k('v_add_f32 v%d, 1.0, v%d' % (t, t))
    k('v_rcp_f32 v%d, v%d' % (t, t)); k('s_nop 0')
    k('v_mul_f32 v%d, v%d, v%d' % (v, v, t))
def epi_gelu(k, p):
    for r in range(4): gelu(k, 20+r, 28)
    k.srd(24, p['ws'], 8*MB, Z); addr(k, 11, 3072, 2); store4(k, 24, 11, 3072)
def epi_gate(k, p):
    k.srd(24, p['bsp'], SZ['bsp']); addr(k, 11, 2, 0); load4(k, 24, 11, 2, 28)
    for r in range(4): k('v_add_f32 v%d, v%d, v%d' % (20+r, 20+r, 28+r))
    k.srd(24, p['ws'], 8*MB, Z); addr(k, 11, 3072, 2); load4(k, 24, 11, 3072, 28)
    for r in range(4): k('v_mul_f32 v%d, v%d, v%d' % (20+r, 20+r, 28+r))
    k.srd(24, p['ws'], 8*MB, U); addr(k, 11, 1536, 2); store4(k, 24, 11, 1536)

ks = [
 ln_kernel('ln1_kernel', 'x', 0, 1280, 640, XN),
 gemm_kernel('ga_kernel', 2048, 640, [('ws', XN, 1280, 'hre', 0, 1280, 2, 640)], epi_T(AT)),
 gemm_kernel('gb_kernel', 2048, 640, [('ws', XN, 1280, 'him', 0, 1280, 2, 640)], epi_T(BT)),
 gemm_kernel('gy_kernel', 2048, 640, [('sim', 0, 4096, 'ws', BT, 4096, 2, 2048), ('sre', 0, 4096, 'ws', AT, 4096, 2, 2048)], epi_res('x', 0, 'ws', H)),
 ln_kernel('ln2_kernel', 'ws', H, 1280, 640, HN),
 gemm_kernel('gz_kernel', 2048, 1536, [('ws', HN, 1280, 'win', 0, 2, 3072, 640)], epi_gelu),
 ln_kernel('ln3_kernel', 'ws', Z + 1536, 3072, 768, Z2N),
 gemm_kernel('gg_kernel', 2048, 768, [('wsp', 0, 4096, 'ws', Z2N, 2, 1536, 2048)], epi_gate),
 gemm_kernel('go_kernel', 2048, 640, [('ws', U, 1536, 'wout', 0, 2, 1280, 768)], epi_res('ws', H, 'out', 0)),
]
e = Kernel('empty_kernel', 256, 256, 0, vgpr=24)
import os
IC = os.environ.get('IC', '')
if IC == 'straight':
    e('.rept %d' % (48*1024//8//8))
    for i in range(8): e('v_fma_f32 v%d, v%d, v%d, v%d' % (8+i, 8+i, 8+i, 8+i))
    e('.endr')
elif IC == 'loop':
    e('s_mov_b32 s4, 48')
    e('L_icl:')
    e('.rept %d' % (1024//8//8))
    for i in range(8): e('v_fma_f32 v%d, v%d, v%d, v%d' % (8+i, 8+i, 8+i, 8+i))
    e('.endr')
    e('s_sub_u32 s4, s4, 1'); e('s_cmp_lg_u32 s4, 0'); e('s_cbranch_scc1 L_icl')
e('s_endpgm')
if IC == 'probe':
    e.L = []
    e('s_cmp_ge_u32 s2, 256'); e('s_cbranch_scc1 L_pend')
    e('s_memtime s[40:41]')
    e('s_load_dwordx2 s[4:5], s[0:1], 0'); e('s_load_dwordx2 s[6:7], s[0:1], 96'); e('s_load_dwordx2 s[8:9], s[0:1], 56'); e('s_load_dwordx2 s[10:11], s[0:1], 48')
    e('v_lshlrev_b32 v4, 7, v0')
    e('s_waitcnt lgkmcnt(0)')
    e('s_memtime s[42:43]')
    e.srd(12, 4, SZ['x']); e.srd(16, 6, 256, 100 << 20); e.srd(20, 8, SZ['wsp']); e.srd(24, 10, SZ['win'])
    e('s_mul_i32 s30, s2, 10240'); e('v_cmp_gt_u32 vcc, 80, v0'); e('s_and_saveexec_b64 s[32:33], vcc')
    e('buffer_load_dword v5, v4, s[12:15], s30 offen'); e('s_mov_b64 exec, s[32:33]')
    e('s_waitcnt vmcnt(0)'); e('s_barrier'); e('s_memtime s[44:45]')
    e('s_lshl_b32 s30, s2, 15'); e('buffer_load_dword v5, v4, s[20:23], s30 offen'); e('s_waitcnt vmcnt(0)'); e('s_barrier'); e('s_memtime s[46:47]')
    e('s_mul_i32 s30, s2, 7680'); e('v_cmp_gt_u32 vcc, 60, v0'); e('s_and_saveexec_b64 s[32:33], vcc')
    e('buffer_load_dword v5, v4, s[24:27], s30 offen'); e('s_mov_b64 exec, s[32:33]')
    e('s_waitcnt vmcnt(0)'); e('s_barrier'); e('s_memtime s[48:49]')
    e('s_waitcnt lgkmcnt(0)')
    e('s_sub_u32 s48, s48, s46'); e('s_sub_u32 s46, s46, s44'); e('s_sub_u32 s44, s44, s42'); e('s_sub_u32 s42, s42, s40')
    e('v_mov_b32 v8, s42'); e('v_mov_b32 v9, s44'); e('v_mov_b32 v10, s46'); e('v_mov_b32 v11, s48')
    e('s_and_b32 s30, s2, 0x3f'); e('s_cmp_lg_u32 s30, 5'); e('s_cbranch_scc1 L_pend')
    e('s_lshr_b32 s30, s2, 6'); e('s_lshl_b32 s30, s30, 4'); e('v_mov_b32 v5, 0'); e('v_cmp_eq_u32 vcc, 0, v0'); e('s_and_saveexec_b64 s[32:33], vcc')
    e('buffer_store_dwordx4 v[8:11], v5, s[16:19], s30 offen')
    e('L_pend:'); e('s_endpgm')
launches = ([e]*NEMPTY + ks) if len(sys.argv) > 3 else (ks + [e]*NEMPTY)
if IC == 'probe':
    c = Kernel('cp_kernel', 8, 64, 0, vgpr=16)
    c('s_cmp_lg_u32 s2, 0'); c('s_cbranch_scc1 L_cend')
    c('s_load_dwordx2 s[4:5], s[0:1], 96'); c('s_load_dwordx2 s[6:7], s[0:1], 88'); c('v_lshlrev_b32 v1, 2, v0'); c('s_waitcnt lgkmcnt(0)')
    c.srd(8, 4, 256, 100 << 20); c.srd(12, 6, 256)
    c('buffer_load_dword v2, v1, s[8:11], 0 offen'); c('s_waitcnt vmcnt(0)'); c('buffer_store_dword v2, v1, s[12:15], 0 offen')
    c('L_cend:'); c('s_endpgm')
    ks.append(c); launches.append(c)
open(sys.argv[2] if len(sys.argv) > 2 else 'naive.s', 'w').write(build(ks + ([e] if NEMPTY else []), launches))
```

```python
import sys
from asmlib import *
NEMPTY = int(sys.argv[1]) if len(sys.argv) > 1 else 0
MB = 1 << 20
XN, AT, BT, H, HN, Z, Z2N, U = [i*8*MB for i in range(8)]

def loadptrs(k, names, base=4):
    d = {}
    for i, n in enumerate(names):
        k('s_load_dwordx2 s[%d:%d], s[0:1], %d' % (base+2*i, base+2*i+1, KA[n]))
        d[n] = base+2*i
    k('s_waitcnt lgkmcnt(0)')
    return d

def ln_kernel(name, src, srcoff, spitch, D, dstoff):
    k = Kernel(name, 512, 256, 0, vgpr=48)
    n = D // 64
    end = 'L_%s_end' % name
    k('s_cmp_ge_u32 s2, 512'); k('s_cbranch_scc1 %s' % end)
    p = loadptrs(k, [src, 'ws'] if src != 'ws' else ['ws'])
    k.srd(16, p[src], SZ[src] - srcoff, srcoff)
    k.srd(20, p['ws'], 8*MB, dstoff)
    k('v_lshrrev_b32 v1, 6, v0'); k('v_and_b32 v0, 63, v0')
    k('s_lshl_b32 s3, s2, 2'); k('v_add_u32 v1, s3, v1')
    k('s_movk_i32 s24, %d' % spitch); k('v_mul_lo_u32 v2, v1, s24'); k('v_lshl_add_u32 v2, v0, 1, v2')
    k('s_movk_i32 s24, %d' % (D*2)); k('v_mul_lo_u32 v3, v1, s24'); k('v_lshl_add_u32 v3, v0, 1, v3')
    for i in range(n): k('buffer_load_ushort v%d, v2, s[16:19], 0 offen offset:%d' % (8+i, i*128))
    k('s_waitcnt vmcnt(0)')
    for i in range(n): k('v_lshlrev_b32 v%d, 16, v%d' % (8+i, 8+i))
    def reduce(r):
        for x in (1, 2, 4, 8, 16, 32):
            k('v_xor_b32 v5, %d, v0' % x); k('v_lshlrev_b32 v5, 2, v5')
            k('ds_bpermute_b32 v6, v5, v%d' % r); k('s_waitcnt lgkmcnt(0)'); k('v_add_f32 v%d, v%d, v6' % (r, r))
    k('v_mov_b32 v4, 0')
    for i in range(n): k('v_add_f32 v4, v4, v%d' % (8+i))
    reduce(4)
    k('v_mul_f32 v4, 0x%x, v4' % f2h(1.0/D))
    for i in range(n): k('v_sub_f32 v%d, v%d, v4' % (8+i, 8+i))
    k('v_mov_b32 v4, 0')
    for i in range(n): k('v_fmac_f32 v4, v%d, v%d' % (8+i, 8+i))
    reduce(4)
    k('v_mov_b32 v7, 0x%x' % f2h(1e-5))
    k('v_fmac_f32 v7, 0x%x, v4' % f2h(1.0/D))
    k('v_rsq_f32 v7, v7'); k('s_nop 0')
    for i in range(n):
        k('v_mul_f32 v%d, v%d, v7' % (8+i, 8+i)); k('v_cvt_pk_bf16_f32 v%d, v%d, v%d' % (8+i, 8+i, 8+i))
        k('buffer_store_short v%d, v3, s[20:23], 0 offen offset:%d' % (8+i, i*128))
    k('%s:' % end); k('s_endpgm')
    return k

import struct
def f2h(f): return struct.unpack('<I', struct.pack('<f', f))[0]

def gemm_kernel(name, M, N, passes, epi):
    nt = N // 64
    grid = (M // 16) * nt
    k = Kernel(name, grid, 256, 0, vgpr=48)
    end = 'L_%s_end' % name
    k('s_cmp_ge_u32 s2, %d' % grid); k('s_cbranch_scc1 %s' % end)
    names = ['x', 'sre', 'sim', 'hre', 'him', 'win', 'wsp', 'bsp', 'wout', 'out', 'ws']
    p = loadptrs(k, names, 40)
    k('s_mov_b32 s4, 0x%x' % ((2**32 + nt - 1)//nt)); k('s_mul_hi_u32 s5, s2, s4'); k('s_mul_i32 s6, s5, %d' % nt); k('s_sub_u32 s6, s2, s6')
    k('v_lshrrev_b32 v1, 6, v0'); k('v_and_b32 v0, 63, v0'); k('v_and_b32 v2, 15, v0'); k('v_lshrrev_b32 v3, 4, v0')
    k('s_lshl_b32 s5, s5, 4'); k('s_lshl_b32 s6, s6, 6')
    k('v_add_u32 v4, s5, v2')
    k('v_lshl_add_u32 v5, v1, 4, v2'); k('v_add_u32 v5, s6, v5')
    for r in range(4): k('v_mov_b32 v%d, 0' % (20+r))
    for pi, (Ab, Ao, sam, Bb, Bo, sbn, sbk, K) in enumerate(passes):
        if pi:
            k('s_nop 7'); k('s_nop 7')
            for r in range(4): k('v_sub_f32 v%d, 0, v%d' % (20+r, 20+r))
        k.srd(8, p[Ab], SZ[Ab] - Ao, Ao); k.srd(12, p[Bb], SZ[Bb] - Bo, Bo)
        k('s_mov_b32 s7, %d' % sam); k('v_mul_lo_u32 v6, v4, s7'); k('v_lshl_add_u32 v6, v3, 4, v6')
        k('s_mov_b32 s7, %d' % sbn); k('v_mul_lo_u32 v7, v5, s7')
        k('s_mov_b32 s7, %d' % (sbk*8)); k('v_mul_lo_u32 v8, v3, s7'); k('v_add_u32 v7, v7, v8')
        k('s_mov_b32 s16, 0'); k('s_mov_b32 s17, 0'); k('s_mov_b32 s18, %d' % (K//32))
        lp = k.label('k')
        k('%s:' % lp)
        k('buffer_load_dwordx4 v[12:15], v6, s[8:11], s16 offen')
        if sbk == 2:
            k('buffer_load_dwordx4 v[16:19], v7, s[12:15], s17 offen')
        else:
            k('s_mov_b32 s19, s17')
            for j in range(8):
                k('buffer_load_ushort v%d, v7, s[12:15], s19 offen' % (32 + j))
                k('s_add_u32 s19, s19, %d' % sbk)
        k('s_add_u32 s16, s16, 64'); k('s_add_u32 s17, s17, %d' % (sbk*32))
        k('s_waitcnt vmcnt(0)')
        if sbk != 2:
            for j in range(4): k('v_lshl_or_b32 v%d, v%d, 16, v%d' % (16+j, 33+2*j, 32+2*j))
            k('s_nop 1')
        k('v_mfma_f32_16x16x32_bf16 v[20:23], v[12:15], v[16:19], v[20:23]')
        k('s_sub_u32 s18, s18, 1'); k('s_cmp_lg_u32 s18, 0'); k('s_cbranch_scc1 %s' % lp)
    k('s_nop 7'); k('s_nop 7')
    k('v_lshlrev_b32 v9, 2, v3'); k('v_add_u32 v9, s5, v9')
    epi(k, p)
    k('%s:' % end); k('s_endpgm')
    return k

def addr(k, vd, som, son):
    k('s_mov_b32 s7, %d' % som); k('v_mul_lo_u32 v%d, v9, s7' % vd)
    k('s_mov_b32 s7, %d' % son); k('v_mul_lo_u32 v10, v5, s7'); k('v_add_u32 v%d, v%d, v10' % (vd, vd))
def store4(k, srd, vaddr, som):
    k('s_mov_b32 s7, 0')
    for r in range(4):
        k('v_cvt_pk_bf16_f32 v%d, v%d, v%d' % (20+r, 20+r, 20+r))
        k('buffer_store_short v%d, v%d, s[%d:%d], s7 offen' % (20+r, vaddr, srd, srd+3)); k('s_add_u32 s7, s7, %d' % som)
def load4(k, srd, vaddr, som, vd):
    k('s_mov_b32 s7, 0')
    for r in range(4):
        k('buffer_load_ushort v%d, v%d, s[%d:%d], s7 offen' % (vd+r, vaddr, srd, srd+3)); k('s_add_u32 s7, s7, %d' % som)
    k('s_waitcnt vmcnt(0)')
    for r in range(4): k('v_lshlrev_b32 v%d, 16, v%d' % (vd+r, vd+r))
def epi_T(off):
    def f(k, p):
        k.srd(24, p['ws'], 8*MB, off); addr(k, 11, 2, 4096); store4(k, 24, 11, 2)
    return f
def epi_res(srcname, srcoff, dstname, dstoff):
    def f(k, p):
        k.srd(24, p[srcname], SZ['x'], srcoff); addr(k, 11, 1280, 2); load4(k, 24, 11, 1280, 28)
        for r in range(4): k('v_add_f32 v%d, v%d, v%d' % (20+r, 20+r, 28+r))
        k.srd(24, p[dstname], SZ['x'], dstoff); store4(k, 24, 11, 1280)
    return f
def gelu(k, v, t):
    c = 2*0.7978845608028654*1.4426950408889634
    k('v_mul_f32 v%d, v%d, v%d' % (t, v, v))
    k('v_mov_b32 v%d, 0x%x' % (t+1, f2h(-c)))
    k('v_fmac_f32 v%d, 0x%x, v%d' % (t+1, f2h(-c*0.044715), t))
    k('v_mul_f32 v%d, v%d, v%d' % (t, t+1, v))
    k('v_exp_f32 v%d, v%d' % (t, t)); k('s_nop 0')
    k('v_add_f32 v%d, 1.0, v%d' % (t, t))
    k('v_rcp_f32 v%d, v%d' % (t, t)); k('s_nop 0')
    k('v_mul_f32 v%d, v%d, v%d' % (v, v, t))
def epi_gelu(k, p):
    for r in range(4): gelu(k, 20+r, 28)
    k.srd(24, p['ws'], 8*MB, Z); addr(k, 11, 3072, 2); store4(k, 24, 11, 3072)
def epi_gate(k, p):
    k.srd(24, p['bsp'], SZ['bsp']); addr(k, 11, 2, 0); load4(k, 24, 11, 2, 28)
    for r in range(4): k('v_add_f32 v%d, v%d, v%d' % (20+r, 20+r, 28+r))
    k.srd(24, p['ws'], 8*MB, Z); addr(k, 11, 3072, 2); load4(k, 24, 11, 3072, 28)
    for r in range(4): k('v_mul_f32 v%d, v%d, v%d' % (20+r, 20+r, 28+r))
    k.srd(24, p['ws'], 8*MB, U); addr(k, 11, 1536, 2); store4(k, 24, 11, 1536)

ks = [
 ln_kernel('ln1_kernel', 'x', 0, 1280, 640, XN),
 gemm_kernel('ga_kernel', 2048, 640, [('ws', XN, 1280, 'hre', 0, 1280, 2, 640)], epi_T(AT)),
 gemm_kernel('gb_kernel', 2048, 640, [('ws', XN, 1280, 'him', 0, 1280, 2, 640)], epi_T(BT)),
 gemm_kernel('gy_kernel', 2048, 640, [('sim', 0, 4096, 'ws', BT, 4096, 2, 2048), ('sre', 0, 4096, 'ws', AT, 4096, 2, 2048)], epi_res('x', 0, 'ws', H)),
 ln_kernel('ln2_kernel', 'ws', H, 1280, 640, HN),
 gemm_kernel('gz_kernel', 2048, 1536, [('ws', HN, 1280, 'win', 0, 2, 3072, 640)], epi_gelu),
 ln_kernel('ln3_kernel', 'ws', Z + 1536, 3072, 768, Z2N),
 gemm_kernel('gg_kernel', 2048, 768, [('wsp', 0, 4096, 'ws', Z2N, 2, 1536, 2048)], epi_gate),
 gemm_kernel('go_kernel', 2048, 640, [('ws', U, 1536, 'wout', 0, 2, 1280, 768)], epi_res('ws', H, 'out', 0)),
]
e = Kernel('empty_kernel', 256, 256, 0, vgpr=24)
import os
IC = os.environ.get('IC', '')
if IC == 'straight':
    e('.rept %d' % (48*1024//8//8))
    for i in range(8): e('v_fma_f32 v%d, v%d, v%d, v%d' % (8+i, 8+i, 8+i, 8+i))
    e('.endr')
elif IC == 'loop':
    e('s_mov_b32 s4, 48')
    e('L_icl:')
    e('.rept %d' % (1024//8//8))
    for i in range(8): e('v_fma_f32 v%d, v%d, v%d, v%d' % (8+i, 8+i, 8+i, 8+i))
    e('.endr')
    e('s_sub_u32 s4, s4, 1'); e('s_cmp_lg_u32 s4, 0'); e('s_cbranch_scc1 L_icl')
e('s_endpgm')
if IC == 'probe':
    e.L = []
    e('s_cmp_ge_u32 s2, 256'); e('s_cbranch_scc1 L_pend')
    e('s_memtime s[40:41]')
    e('s_load_dwordx2 s[4:5], s[0:1], 0'); e('s_load_dwordx2 s[6:7], s[0:1], 96'); e('s_load_dwordx2 s[8:9], s[0:1], 56'); e('s_load_dwordx2 s[10:11], s[0:1], 48')
    e('v_lshlrev_b32 v4, 7, v0')
    e('s_waitcnt lgkmcnt(0)')
    e('s_memtime s[42:43]')
    e.srd(12, 4, SZ['x']); e.srd(16, 6, 256, 100 << 20); e.srd(20, 8, SZ['wsp']); e.srd(24, 10, SZ['win'])
    e('s_mul_i32 s30, s2, 10240'); e('v_cmp_gt_u32 vcc, 80, v0'); e('s_and_saveexec_b64 s[32:33], vcc')
    e('buffer_load_dword v5, v4, s[12:15], s30 offen'); e('s_mov_b64 exec, s[32:33]')
    e('s_waitcnt vmcnt(0)'); e('s_barrier'); e('s_memtime s[44:45]')
    e('s_lshl_b32 s30, s2, 15'); e('buffer_load_dword v5, v4, s[20:23], s30 offen'); e('s_waitcnt vmcnt(0)'); e('s_barrier'); e('s_memtime s[46:47]')
    e('s_mul_i32 s30, s2, 7680'); e('v_cmp_gt_u32 vcc, 60, v0'); e('s_and_saveexec_b64 s[32:33], vcc')
    e('buffer_load_dword v5, v4, s[24:27], s30 offen'); e('s_mov_b64 exec, s[32:33]')
    e('s_waitcnt vmcnt(0)'); e('s_barrier'); e('s_memtime s[48:49]')
    e('s_waitcnt lgkmcnt(0)')
    e('s_sub_u32 s48, s48, s46'); e('s_sub_u32 s46, s46, s44'); e('s_sub_u32 s44, s44, s42'); e('s_sub_u32 s42, s42, s40')
    e('v_mov_b32 v8, s42'); e('v_mov_b32 v9, s44'); e('v_mov_b32 v10, s46'); e('v_mov_b32 v11, s48')
    e('s_and_b32 s30, s2, 0x3f'); e('s_cmp_lg_u32 s30, 5'); e('s_cbranch_scc1 L_pend')
    e('s_lshr_b32 s30, s2, 6'); e('s_lshl_b32 s30, s30, 4'); e('v_mov_b32 v5, 0'); e('v_cmp_eq_u32 vcc, 0, v0'); e('s_and_saveexec_b64 s[32:33], vcc')
    e('buffer_store_dwordx4 v[8:11], v5, s[16:19], s30 offen')
    e('L_pend:'); e('s_endpgm')
launches = ([e]*NEMPTY + ks) if len(sys.argv) > 3 else (ks + [e]*NEMPTY)
if IC == 'probe':
    c = Kernel('cp_kernel', 8, 64, 0, vgpr=16)
    c('s_cmp_lg_u32 s2, 0'); c('s_cbranch_scc1 L_cend')
    c('s_load_dwordx2 s[4:5], s[0:1], 96'); c('s_load_dwordx2 s[6:7], s[0:1], 88'); c('v_lshlrev_b32 v1, 2, v0'); c('s_waitcnt lgkmcnt(0)')
    c.srd(8, 4, 256, 100 << 20); c.srd(12, 6, 256)
    c('buffer_load_dword v2, v1, s[8:11], 0 offen'); c('s_waitcnt vmcnt(0)'); c('buffer_store_dword v2, v1, s[12:15], 0 offen')
    c('L_cend:'); c('s_endpgm')
    ks.append(c); launches.append(c)
if IC == 'span':
    e.L = []
    e('s_memrealtime s[8:9]'); e('s_load_dwordx2 s[4:5], s[0:1], 96'); e('s_cmp_lg_u32 s2, 0'); e('s_cbranch_scc1 L_e0'); e('s_waitcnt lgkmcnt(0)')
    e.srd(12, 4, 256, 200 << 20); e('v_mov_b32 v1, s8'); e('v_mov_b32 v2, 0'); e('buffer_store_dword v1, v2, s[12:15], 0 offen'); e('L_e0:'); e('s_endpgm')
    c = Kernel('sp_kernel', 8, 64, 0, vgpr=16)
    c('s_cmp_lg_u32 s2, 0'); c('s_cbranch_scc1 L_c0'); c('s_load_dwordx2 s[4:5], s[0:1], 96'); c('s_waitcnt lgkmcnt(0)'); c.srd(12, 4, 256, 200 << 20)
    c('v_mov_b32 v2, 0'); c('buffer_load_dword v1, v2, s[12:15], 0 offen'); c('s_waitcnt vmcnt(0)'); c('v_readfirstlane_b32 s8, v1')
    c('L_sp:'); c('s_memrealtime s[10:11]'); c('s_waitcnt lgkmcnt(0)'); c('s_sub_u32 s10, s10, s8'); c('s_cmp_lt_u32 s10, 42000'); c('s_cbranch_scc1 L_sp')
    c('L_c0:'); c('s_endpgm')
    ks.append(c); launches.append(c)
open(sys.argv[2] if len(sys.argv) > 2 else 'naive.s', 'w').write(build(ks + ([e] if NEMPTY else []), launches))
```
